```python
import torch

def _softmax(x, axis=-1):
    return torch.softmax(x, dim=axis)
def _gelu(x):
    return torch.nn.functional.gelu(x, approximate="tanh")
def _silu(x):
    return torch.nn.functional.silu(x)
def _sigmoid(x):
    return torch.sigmoid(x)
def _layernorm(x, axis=-1, eps=1e-5):
    m = x.mean(dim=axis, keepdim=True)
    v = x.var(dim=axis, keepdim=True, unbiased=False)
    return (x - m) / torch.sqrt(v + eps)
def _scatter_add(tgt, idx, src, axis=0):
    return tgt.clone().index_add_(axis, idx, src)
def _segment_sum(src, seg, n):
    out = torch.zeros((n,) + src.shape[1:], dtype=src.dtype)
    return out.index_add_(0, seg, src)
def _pad(x, pw):
    flat = tuple(v for pair in reversed(pw) for v in pair)
    return torch.nn.functional.pad(x, flat)

kernel_name = 'interleave_layers__ssm_conv_h3__ssm_conv_s4d__prompt'

def setup_inputs():

    _w = (lambda a: (lambda t: t.to(torch.bfloat16) if t.is_floating_point() else t)(torch.as_tensor(a)))
    def _A_setup():
        B, S, D = 1, 2048, 512
        ks = 4
        return {
            "q": _w((lambda *s: torch.randn(*s, dtype=torch.bfloat16) * 0.05)(B, S, D)),
            "k": _w((lambda *s: torch.randn(*s, dtype=torch.bfloat16) * 0.4)(B, S, D)),
            "v": _w((lambda *s: torch.randn(*s, dtype=torch.bfloat16) * 0.4)(B, S, D)),
            "shift_k": _w((lambda *s: torch.randn(*s, dtype=torch.bfloat16) * 0.4)(D, ks) * 0.5),
            "ssm_k": _w((lambda *s: torch.randn(*s, dtype=torch.bfloat16) * 0.4)(D, S) * (1.0 / S ** 0.5)),
            "ssm_D": _w((lambda *s: torch.randn(*s, dtype=torch.bfloat16) * 0.4)(D)),
        }
    _A_in = _A_setup()

    def _B_setup():
        Bsz, L, D, N = 1, 2048, 512, 128
        return {
            "u": _w((lambda *s: torch.randn(*s, dtype=torch.bfloat16) * 0.05)(Bsz, L, D)),
            "log_A_real": _w((lambda *s: torch.randn(*s, dtype=torch.bfloat16) * 6.4)(D, N) * 0.5),
            "A_imag": _w((lambda *s: torch.randn(*s, dtype=torch.bfloat16) * 0.05)(D, N) * 3.14),
            "C_real": _w((lambda *s: torch.randn(*s, dtype=torch.bfloat16) * 0.1)(D, N) / N ** 0.5),
            "C_imag": _w((lambda *s: torch.randn(*s, dtype=torch.bfloat16) * 0.1)(D, N) / N ** 0.5),
            "log_dt": _w((lambda *s: torch.randn(*s, dtype=torch.bfloat16) * 0.05)(D) * 0.5 - 4.0),
            "D_skip": _w((lambda *s: torch.randn(*s, dtype=torch.bfloat16) * 0.05)(D)),
        }
    _B_in = _B_setup()

    return {
        "A_q": _A_in["q"],
        "A_k": _A_in["k"],
        "A_v": _A_in["v"],
        "A_shift_k": _A_in["shift_k"],
        "A_ssm_k": _A_in["ssm_k"],
        "A_ssm_D": _A_in["ssm_D"],
        "B_u": _B_in["u"],
        "B_log_A_real": _B_in["log_A_real"],
        "B_A_imag": _B_in["A_imag"],
        "B_C_real": _B_in["C_real"],
        "B_C_imag": _B_in["C_imag"],
        "B_log_dt": _B_in["log_dt"],
        "B_D_skip": _B_in["D_skip"],
    }

def reference(A_q, A_k, A_v, A_shift_k, A_ssm_k, A_ssm_D, B_u, B_log_A_real, B_A_imag, B_C_real, B_C_imag, B_log_dt, B_D_skip):
    def _A_ref(q, k, v, shift_k, ssm_k, ssm_D):
        B, S, D = q.shape
        ks = shift_k.shape[-1]
        k_pad = _pad(k, ((0, 0), (ks - 1, 0), (0, 0)))
        k_shift = torch.zeros_like(k)
        for t in range(ks):
            k_shift = k_shift + k_pad[:, t:t + S, :] * shift_k[:, ks - 1 - t][None, None, :]
        kv = k_shift * v
        L = 2 * S
        kv_pad = _pad(kv, ((0, 0), (0, S), (0, 0)))
        kf_pad = _pad(ssm_k, ((0, 0), (0, S)))
        kv_f = (lambda x, axes=(-2,-1): torch.fft.rfft2(x.float(), dim=axes))(kv_pad[:, None, :, :], axes=(1, 2))
        kf_f = (lambda x, axes=(-2,-1): torch.fft.rfft2(x.float(), dim=axes))(kf_pad[:, None, :], axes=(1, 2))
        kf_f = (lambda x, *d: x.permute(*d))(kf_f, 1, 2, 0)
        y_f = kv_f * kf_f[None, :, :, :]
        y = (lambda x, s, axes=(-2,-1): torch.fft.irfft2(x, s=s, dim=axes).to(torch.bfloat16))(y_f, (1, L), axes=(1, 2))[:, 0, :S, :]
        y = y + kv * ssm_D[None, None, :]
        return q * y

    def _B_ref(u, log_A_real, A_imag, C_real, C_imag, log_dt, D_skip):
        L = u.shape[1]
        dt = torch.exp(log_dt)
        A = -torch.exp(log_A_real) + 1j * A_imag
        C = (C_real + 1j * C_imag) * dt[:, None]
        pos = (lambda x, dt: x.to(dt))(torch.arange(L), log_dt.dtype)
        P = torch.exp((A * dt[:, None])[:, :, None] * pos[None, None, :])
        K = 2.0 * torch.einsum("dn,dnl->dl", C, P).real
        L2 = 2 * L
        u_t = (lambda x, *d: x.permute(*d))(u, 0, 2, 1)
        Kf = (lambda x, *a, **k: torch.fft.rfft(x.float(), *a, **k))(K, L2)
        Uf = (lambda x, *a, **k: torch.fft.rfft(x.float(), *a, **k))(u_t, L2)
        y = (lambda x, *a, **k: torch.fft.irfft(x, *a, **k).to(torch.bfloat16))(Uf * Kf[None, :, :], L2)[:, :, :L]
        y = (lambda x, *d: x.permute(*d))(y, 0, 2, 1)
        return y + u * D_skip[None, None, :]

    x = A_q
    x = x + _A_ref(_layernorm(x, axis=-1), A_k, A_v, A_shift_k, A_ssm_k, A_ssm_D)
    x = x + _B_ref(_layernorm(x, axis=-1), B_log_A_real, B_A_imag, B_C_real, B_C_imag, B_log_dt, B_D_skip)
    x = x + _A_ref(_layernorm(x, axis=-1), A_k, A_v, A_shift_k, A_ssm_k, A_ssm_D)
    x = x + _B_ref(_layernorm(x, axis=-1), B_log_A_real, B_A_imag, B_C_real, B_C_imag, B_log_dt, B_D_skip)
    return x
```

```python
import re

REG_RE = re.compile(r'\b([vas])(\d+)\b|\b([vas])\[(\d+):(\d+)\]|\b(vcc|exec|m0|scc)\b')

TRANS = ('v_exp_f32', 'v_log_f32', 'v_rcp_f32', 'v_rsq_f32', 'v_sqrt_f32', 'v_sin_f32',
         'v_cos_f32', 'v_rcp_iflag_f32')


def regs_of(tok):
    out = []
    for m in REG_RE.finditer(tok):
        if m.group(1):
            out.append((m.group(1), int(m.group(2))))
        elif m.group(3):
            for i in range(int(m.group(4)), int(m.group(5)) + 1):
                out.append((m.group(3), i))
        else:
            out.append((m.group(6), 0))
    return out


def split_ops(s):
    ops, depth, cur = [], 0, ''
    for ch in s:
        if ch == '[' or ch == '(':
            depth += 1
        elif ch == ']' or ch == ')':
            depth -= 1
        if ch == ',' and depth == 0:
            ops.append(cur.strip())
            cur = ''
        else:
            cur += ch
    if cur.strip():
        ops.append(cur.strip())
    return ops


class Ins:
    __slots__ = ('text', 'op', 'cls', 'wr', 'rd', 'passes', 'srcc', 'srcab', 'dpp', 'sdwa',
                 'trans', 'ws', 'wide_store_data', 'perm', 'rdlane')

    def __init__(self, text):
        self.text = text
        t = text.split(';')[0].strip()
        self.op = t.split()[0] if t else ''
        rest = t[len(self.op):].strip()
        mods = ''
        m = re.search(r'\s(op_sel|op_sel_hi|neg_lo|neg_hi|quad_perm|row_|wave_|dst_sel|src0_sel|offset|offen|bank_mask|bitop3|sc0|sc1|nt\b|lds\b|bound_ctrl|clamp|mul:|div:)', ' ' + rest)
        if m:
            mods = (' ' + rest)[m.start():]
            rest = (' ' + rest)[:m.start()].strip()
        ops = split_ops(rest)
        op = self.op
        self.wr, self.rd = [], []
        self.passes = 0
        self.srcc, self.srcab = [], []
        self.dpp = ('_dpp' in op) or ('row_' in mods) or ('quad_perm' in mods) or ('wave_' in mods)
        self.sdwa = ('_sdwa' in op) or ('dst_sel' in mods)
        self.trans = op.replace('_e32', '').replace('_e64', '') in TRANS
        self.ws = 1
        self.wide_store_data = []
        self.perm = op.startswith('v_permlane')
        self.rdlane = op.startswith('v_readlane') or op.startswith('v_readfirstlane')
        if op.endswith(':') or op == '' or op.startswith('.'):
            self.cls = 'label'
            self.ws = 0
        elif op == 's_nop':
            self.cls = 'salu'
            self.ws = int(ops[0], 0) + 1
        elif op.startswith('v_mfma'):
            self.cls = 'mfma'
            self.wr = regs_of(ops[0])
            self.srcab = regs_of(ops[1]) + regs_of(ops[2])
            self.srcc = regs_of(ops[3])
            self.rd = self.srcab + self.srcc
            if '16x16x32' in op or '16x16x16' in op:
                self.passes = 4
            elif '32x32x16' in op or '32x32x8' in op:
                self.passes = 8
            else:
                raise ValueError('unknown mfma ' + op)
        elif op.startswith('v_'):
            self.cls = 'valu'
            if op.startswith('v_permlane') or op.startswith('v_swap'):
                self.wr = regs_of(ops[0]) + regs_of(ops[1])
                self.rd = list(self.wr)
            elif op.startswith('v_add_co') or op.startswith('v_sub_co') or op.startswith('v_addc_co') or op.startswith('v_subb_co'):
                self.wr = regs_of(ops[0]) + regs_of(ops[1])
                for o in ops[2:]:
                    self.rd += regs_of(o)
            else:
                self.wr = regs_of(ops[0])
                for o in ops[1:]:
                    self.rd += regs_of(o)
                if op.startswith('v_fmac') or op.startswith('v_pk_fmac') or op.startswith('v_dot2c') or self.dpp or self.sdwa or op.startswith('v_writelane'):
                    self.rd += regs_of(ops[0])
                if op.startswith('v_cmpx'):
                    self.wr += [('exec', 0)]
        elif op.startswith('ds_'):
            self.cls = 'ds'
            if op.startswith('ds_read') or op.startswith('ds_bpermute') or op.startswith('ds_permute') or op.startswith('ds_swizzle') or '_rtn' in op:
                self.wr = regs_of(ops[0])
                for o in ops[1:]:
                    self.rd += regs_of(o)
                if 'd16' in op:
                    self.rd += regs_of(ops[0])
            else:
                for o in ops:
                    self.rd += regs_of(o)
        elif op.startswith('buffer_') or op.startswith('global_') or op.startswith('flat_'):
            self.cls = 'vmem'
            if 'load' in op and ' lds' not in mods:
                self.wr = regs_of(ops[0])
                for o in ops[1:]:
                    self.rd += regs_of(o)
                if 'd16' in op:
                    self.rd += regs_of(ops[0])
            elif 'atomic' in op and 'sc0' in mods:
                self.wr = regs_of(ops[0])
                for o in ops:
                    self.rd += regs_of(o)
            else:
                for o in ops:
                    self.rd += regs_of(o)
                if 'store' in op and ('x3' in op or 'x4' in op):
                    d = ops[0] if op.startswith('buffer_') else ops[1]
                    self.wide_store_data = regs_of(d)
        elif op.startswith('s_'):
            self.cls = 'salu'
            if op.startswith('s_cmp') or op.startswith('s_cbranch') or op.startswith('s_branch') or op.startswith('s_waitcnt') or op in ('s_barrier', 's_endpgm', 's_setprio', 's_sleep'):
                for o in ops:
                    self.rd += regs_of(o)
            else:
                if ops:
                    self.wr = regs_of(ops[0])
                for o in ops[1:]:
                    self.rd += regs_of(o)
                if 'saveexec' in op:
                    self.wr += [('exec', 0)]
        else:
            raise ValueError('cannot classify: ' + text)


def overlap(a, b):
    return bool(set(a) & set(b))


def need(prev, cur):
    n = 0
    pv = [r for r in prev.wr if r[0] in 'va']
    ps = [r for r in prev.wr if r[0] in ('s', 'vcc')]
    cur_v_rd = [r for r in cur.rd if r[0] in 'va']
    cur_v_wr = [r for r in cur.wr if r[0] in 'va']
    cur_s_rd = [r for r in cur.rd if r[0] in ('s', 'vcc')]
    if prev.cls == 'valu':
        if cur.cls == 'mfma' and overlap(pv, cur.rd):
            n = max(n, 2)
        if cur.cls == 'valu':
            if cur.dpp and overlap(pv, cur_v_rd):
                n = max(n, 2)
            if cur.perm and overlap(pv, cur_v_rd):
                n = max(n, 2)
            if cur.rdlane and overlap(pv, cur_v_rd):
                n = max(n, 1)
            if prev.trans and not cur.trans and overlap(pv, cur_v_rd):
                n = max(n, 1)
            if prev.sdwa and (overlap(pv, cur_v_rd) or overlap(pv, cur_v_wr)):
                n = max(n, 1)
            if overlap(ps, cur_s_rd):
                n = max(n, 4 if (cur.rdlane or cur.op.startswith('v_writelane') or cur.op.startswith('v_div_fmas')) else 2)
            if ('exec', 0) in prev.wr:
                if cur.dpp:
                    n = max(n, 5)
                if cur.rdlane or cur.perm:
                    n = max(n, 4)
        if cur.cls == 'mfma' and ('exec', 0) in prev.wr:
            n = max(n, 4)
        if cur.cls == 'vmem' and overlap(ps, cur_s_rd):
            n = max(n, 5)
        if prev.trans and cur.cls in ('ds', 'vmem') and overlap(pv, cur_v_rd):
            n = max(n, 1)
    if prev.cls == 'mfma':
        p = prev.passes
        tab_rw = {2: 5, 4: 8, 8: 12, 16: 20}
        if cur.cls == 'mfma':
            if overlap(pv, cur.srcab):
                n = max(n, tab_rw[p])
            if overlap(pv, cur.srcc):
                if not (set(pv) == set(cur.srcc) and cur.passes == p):
                    n = max(n, {2: 4, 4: 6, 8: 10, 16: 18}[p])
                elif p == 2:
                    n = max(n, 2)
            elif overlap(pv, cur.wr):
                n = max(n, tab_rw[p])
        elif cur.cls in ('valu', 'ds', 'vmem'):
            if overlap(pv, cur_v_rd) or overlap(pv, cur_v_wr):
                n = max(n, tab_rw[p])
            if cur.cls == 'valu' and overlap(prev.srcc, cur_v_wr):
                n = max(n, {2: 1, 4: 3, 8: 7, 16: 15}[p])
    if prev.cls == 'vmem' and prev.wide_store_data:
        if overlap(prev.wide_store_data, cur_v_wr):
            n = max(n, 2 if cur.cls in ('valu', 'mfma') else 1)
    if prev.cls == 'salu' and ('m0', 0) in prev.wr:
        if cur.cls in ('vmem', 'ds'):
            n = max(n, 1)
    return n


class Asm:
    def __init__(self):
        self.ins = []

    def __call__(self, text):
        for line in text.strip().split('\n'):
            line = line.strip()
            if not line or line.startswith(';'):
                continue
            self.ins.append(Ins(line))

    def label(self, name):
        self.ins.append(Ins(name + ':'))

    def finalize(self):
        out = []
        hist = []
        for cur in self.ins:
            if cur.cls == 'label':
                out.append(cur)
                continue
            req = 0
            dist = 0
            for prev in reversed(out):
                if prev.cls == 'label':
                    continue
                r = need(prev, cur) - dist
                req = max(req, r)
                dist += prev.ws
                if dist > 24:
                    break
            while req > 0:
                k = min(req, 16)
                out.append(Ins('s_nop %d' % (k - 1)))
                req -= k
            out.append(cur)
        lines = []
        for i in out:
            if i.cls == 'label':
                lines.append(i.text)
            else:
                lines.append('    ' + i.text)
        return '\n'.join(lines) + '\n'

    def max_regs(self):
        mv = ma = ms = -1
        for i in self.ins:
            for k, n in i.wr + i.rd:
                if k == 'v':
                    mv = max(mv, n)
                elif k == 'a':
                    ma = max(ma, n)
                elif k == 's':
                    ms = max(ms, n)
        return mv + 1, ma + 1, ms + 1


def v(a, n=1):
    return 'v%d' % a if n == 1 else 'v[%d:%d]' % (a, a + n - 1)


def a(x, n=1):
    return 'a%d' % x if n == 1 else 'a[%d:%d]' % (x, x + n - 1)


def s(x, n=1):
    return 's%d' % x if n == 1 else 's[%d:%d]' % (x, x + n - 1)
```

```python
import os
import struct
import sys
from asmlib import Asm, v, a, s

L = 2048
D = 512
PITCH = 8320
TBYTES = 256 * PITCH
WS_KVT = 0x000000
WS_X0T = 0x400000
WS_YAT = 0x800000
WS_X2T = 0xC00000
WS_KHI = 0x1000000
WS_KLO = 0x1200000
WS_ST1 = 0x1400000
WS_ST2 = 0x1408000
WS_KSC = 0x1410000
WS_TS = 0x2000000
NK = 3
FP16 = int(os.environ.get('FP16', '0'))
TIMING = int(os.environ.get('TIMING', '0'))
SPIN_MAX = 1 << 20

KA_Q, KA_K, KA_V, KA_SHIFT, KA_SSMK, KA_SSMD, KA_U, KA_LAR, KA_AIM, KA_CRE, KA_CIM, KA_LDT, KA_DSK, KA_OUT, KA_DBG, KA_WS = [8 * i for i in range(16)]


def f32(x):
    return '0x%08x' % struct.unpack('<I', struct.pack('<f', x))[0]


def f32val(x):
    return struct.unpack('<f', struct.pack('<f', x))[0]


def srd(A, d, p, off, nbytes):
    if off:
        A(f's_add_u32 {s(d)}, {s(p)}, 0x{off:x}')
        A(f's_addc_u32 {s(d+1)}, {s(p+1)}, 0')
    else:
        A(f's_mov_b32 {s(d)}, {s(p)}')
        A(f's_mov_b32 {s(d+1)}, {s(p+1)}')
    A(f's_mov_b32 {s(d+2)}, 0x{nbytes:x}')
    A(f's_mov_b32 {s(d+3)}, 0x20000')


def xcd_id(A, dst, src, tmp):
    A(f's_and_b32 {s(tmp)}, {s(src)}, 7')
    A(f's_lshl_b32 {s(tmp)}, {s(tmp)}, 5')
    A(f's_lshr_b32 {s(dst)}, {s(src)}, 3')
    A(f's_add_u32 {s(dst)}, {s(dst)}, {s(tmp)}')


def unpack(A, dst, src):
    A(f'v_lshlrev_b32 {v(dst)}, 16, {v(src)}')
    A(f'v_and_b32 {v(dst+1)}, 0xffff0000, {v(src)}')


def rnd(A, p, tmp):
    A(f'v_cvt_pk_bf16_f32 {v(tmp)}, {v(p)}, {v(p+1)}')
    unpack(A, p, tmp)


def interleave(A, seqs):
    n = max(len(q) for q in seqs)
    for i in range(n):
        for q in seqs:
            if i < len(q):
                A(q[i])


class Seq(list):
    def __call__(self, text):
        self.append(text)


def stamp(A, i):
    if TIMING:
        A(f's_memrealtime s[{64+2*i}:{65+2*i}]')


_lab = [0]


def stamp_out(A, kidx, n):
    if not TIMING:
        return
    A('s_waitcnt vmcnt(0)')
    stamp(A, n - 1)
    A(f's_load_dwordx2 s[90:91], s[0:1], {KA_WS}')
    A('s_waitcnt lgkmcnt(0)')
    srd(A, 92, 90, WS_TS + kidx * 65536, 65536)
    A('s_lshl_b32 s90, s2, 7')
    A('s_mov_b64 exec, -1')
    A('v_cmp_eq_u32 vcc, 0, v0')
    A('s_and_saveexec_b64 s[96:97], vcc')
    _lab[0] += 1
    lab = f'TS_skip_{_lab[0]}'
    A(f's_cbranch_execz {lab}')
    A('v_mov_b32 v1, s90')
    for i in range(n):
        A(f'v_mov_b32 v2, s{64+2*i}')
        A(f'v_mov_b32 v3, s{65+2*i}')
        A(f'buffer_store_dwordx2 v[2:3], v1, s[92:95], 0 offen offset:{8*i}')
        A('s_nop 1')
    A.label(lab)


LOG2E = 1.4426950408889634
LOG2E_HI = f32val(LOG2E)
LOG2E_LO = LOG2E - LOG2E_HI
LN2 = 0.6931471805599453
INV2PI = 0.15915494309189535

KPB = 9856
KGEN_LDS = 4096 + 2 * KPB + 2 * 3072 + 64
CP = 4160
FP = 4608
EX_W = 10240


def ch_bytes(nparts):
    return 4 * CP + nparts * FP


def conv_lds(nparts):
    return 2 * ch_bytes(nparts) + 512


def gen_kgen(A):
    A(f's_load_dwordx8 s[4:11], s[0:1], {KA_LAR}')
    A(f's_load_dwordx2 s[12:13], s[0:1], {KA_LDT}')
    A(f's_load_dwordx2 s[14:15], s[0:1], {KA_WS}')
    xcd_id(A, 3, 2, 17)
    A('s_lshl_b32 s16, s3, 9')
    A('v_lshlrev_b32 v1, 1, v0')
    A('v_add_u32 v1, s16, v1')
    A('v_lshrrev_b32 v2, 7, v0')
    A('s_lshl_b32 s16, s3, 2')
    A('v_lshlrev_b32 v3, 1, v2')
    A('v_add_u32 v3, s16, v3')
    A('s_waitcnt lgkmcnt(0)')
    srd(A, 20, 4, 0, 2 * D * 128)
    srd(A, 24, 6, 0, 2 * D * 128)
    srd(A, 28, 8, 0, 2 * D * 128)
    srd(A, 32, 10, 0, 2 * D * 128)
    srd(A, 36, 12, 0, 2 * D)
    A('buffer_load_ushort v4, v3, s[36:39], 0 offen')
    A('buffer_load_ushort v5, v1, s[20:23], 0 offen')
    A('buffer_load_ushort v6, v1, s[24:27], 0 offen')
    A('buffer_load_ushort v7, v1, s[28:31], 0 offen')
    A('buffer_load_ushort v8, v1, s[32:35], 0 offen')
    srd(A, 40, 14, WS_KHI, 2 * D * L)
    srd(A, 44, 14, WS_KLO, 2 * D * L)
    srd(A, 56, 14, WS_ST1, 65536 + 4 * D)
    A('v_mov_b32 v9, -1')
    A('s_lshl_b32 s16, s3, 8')
    A('v_lshlrev_b32 v10, 2, v0')
    A('v_add_u32 v10, s16, v10')
    A('v_cmp_gt_u32 vcc, 64, v0')
    A('s_and_saveexec_b64 s[18:19], vcc')
    A('s_cbranch_execz KG_noinit')
    A('buffer_store_dword v9, v10, s[56:59], 0 offen')
    A.label('KG_noinit')
    A('s_mov_b64 exec, s[18:19]')
    A('v_and_b32 v10, 15, v0')
    A('v_bfe_u32 v11, v0, 4, 2')
    A('v_lshrrev_b32 v12, 3, v10')
    A('v_lshlrev_b32 v12, 7, v12')
    A('v_and_b32 v13, 7, v10')
    A('v_add_u32 v12, v12, v13')
    A('v_lshrrev_b32 v13, 2, v10')
    A('v_lshlrev_b32 v13, 7, v13')
    A('v_and_b32 v14, 3, v10')
    A('v_lshl_add_u32 v13, v14, 1, v13')
    A('v_add_u32 v13, 0x100, v13')
    A('v_and_b32 v14, 7, v10')
    A('v_lshrrev_b32 v14, 1, v14')
    A('v_lshlrev_b32 v14, 7, v14')
    A('v_and_b32 v15, 1, v10')
    A('v_lshl_add_u32 v14, v15, 2, v14')
    A('v_add_u32 v14, 0x200, v14')
    A('v_cmp_gt_u32 vcc, 8, v10')
    A('v_cndmask_b32 v13, v14, v13, vcc')
    A('v_lshlrev_b32 v14, 7, v10')
    A('v_add_u32 v14, 0x400, v14')
    A('v_cmp_gt_u32 vcc, 9, v10')
    A('v_cndmask_b32 v14, 0, v14, vcc')
    A('v_lshlrev_b32 v15, 3, v10')
    PP = 16
    for t, src in enumerate((12, 13, 14, 15)):
        A(f'v_cvt_f32_u32 {v(PP+2*t)}, {v(src)}')
        A(f'v_cvt_f32_u32 {v(PP+2*t+1)}, {v(src)}')
    A(f'v_mul_u32_u24 v24, {KPB}, v2')
    A('v_mul_u32_u24 v9, 144, v11')
    A('v_add3_u32 v24, v24, v9, 16')
    A('v_add_u32 v24, 4080, v24')
    for t in range(3):
        A(f'v_lshrrev_b32 v9, 3, {v(12+t)}')
        A(f'v_add_u32 v9, v9, {v(12+t)}')
        A(f'v_lshl_add_u32 {v(25+t)}, v9, 2, v24')
    A('v_and_b32 v9, 63, v0')
    A('v_lshlrev_b32 v9, 4, v9')
    A('v_mul_u32_u24 v24, 3072, v2')
    A('v_add_u32 v9, v9, v24')
    A(f'v_add_u32 v9, {4096+2*KPB}, v9')
    A('v_lshlrev_b32 v28, 4, v0')
    A('v_lshrrev_b32 v29, 6, v0')
    A('v_lshlrev_b32 v29, 10, v29')
    A('v_lshl_add_u32 v29, v11, 6, v29')
    A(f's_mov_b32 s50, {f32(LOG2E_HI)}')
    A(f's_mov_b32 s51, {f32(LOG2E_LO)}')
    A(f's_mov_b32 s52, {f32(LN2)}')
    A(f's_mov_b32 s53, {f32(INV2PI)}')

    def expbf(S, x, t, lo):
        S(f'v_mul_f32 {v(t)}, s50, {v(x)}')
        S(f'v_fma_f32 {v(lo)}, {v(x)}, s50, -{v(t)}')
        S(f'v_fma_f32 {v(lo)}, {v(x)}, s51, {v(lo)}')
        S(f'v_exp_f32 {v(t)}, {v(t)}')
        S(f'v_mul_f32 {v(lo)}, s52, {v(lo)}')
        S(f'v_fma_f32 {v(x)}, {v(t)}, {v(lo)}, {v(t)}')
        S(f'v_cvt_pk_bf16_f32 {v(x)}, {v(x)}, {v(x)}')
        S(f'v_lshlrev_b32 {v(x)}, 16, {v(x)}')
    A('s_waitcnt vmcnt(0)')
    stamp(A, 1)
    for r in (4, 5, 6, 7, 8):
        A(f'v_lshlrev_b32 {v(r)}, 16, {v(r)}')
    S1, S2 = Seq(), Seq()
    expbf(S1, 4, 30, 31)
    expbf(S2, 5, 32, 33)
    interleave(A, [S1, S2])
    A('v_mul_f32 v36, v5, v4')
    A('v_mul_f32 v37, v6, v4')
    A('v_mul_f32 v38, v7, v4')
    A('v_mul_f32 v39, v8, v4')
    A('v_mul_f32 v36, s50, v36')
    A('v_mul_f32 v37, s53, v37')
    A('v_add_f32 v38, v38, v38')
    A('v_add_f32 v39, v39, v39')
    A('v_sub_f32 v36, 0, v36')
    A('ds_write_b128 v28, v[36:39]')
    BND = 4096 + 2 * KPB + 2 * 3072
    if FP16:
        A('v_add_f32 v30, abs(v38), abs(v39)')
        for sh in (1, 2, 4, 8):
            A(f'v_add_f32_dpp v30, v30, v30 row_shr:{sh} row_mask:0xf bank_mask:0xf bound_ctrl:0')
        A('v_add_f32_dpp v30, v30, v30 row_bcast:15 row_mask:0xa bank_mask:0xf')
        A('v_add_f32_dpp v30, v30, v30 row_bcast:31 row_mask:0xc bank_mask:0xf')
        A('v_lshrrev_b32 v31, 6, v0')
        A('v_lshlrev_b32 v31, 2, v31')
        A('v_and_b32 v32, 63, v0')
        A('v_cmp_eq_u32 vcc, 63, v32')
        A('s_and_saveexec_b64 s[18:19], vcc')
        A(f'ds_write_b32 v31, v30 offset:{BND}')
        A('s_mov_b64 exec, s[18:19]')
    ACC = 40
    for i in range(12):
        A(f'v_mov_b32 {v(ACC+i)}, 0')
    A('s_waitcnt lgkmcnt(0)')
    MP = 52
    ZH, ZL = 68, 72
    RH, RL = 76, 88
    SCR = 100
    for sg in range(4):
        for e in range(4):
            A(f'ds_read_b128 {v(MP+4*e,4)}, v29 offset:{256*sg+16*e}')
        A('s_waitcnt lgkmcnt(0)')
        for t in range(4):
            seqs = []
            for e in range(4):
                S = Seq()
                x = SCR + 8 * e
                c = x + 2
                E = x + 4
                tt = x + 6
                mp = MP + 4 * e
                S(f'v_pk_mul_f32 {v(x,2)}, {v(mp,2)}, {v(PP+2*t,2)}')
                S(f'v_fract_f32 {v(x+1)}, {v(x+1)}')
                S(f'v_exp_f32 {v(E)}, {v(x)}')
                S(f'v_cos_f32 {v(c)}, {v(x+1)}')
                S(f'v_sin_f32 {v(c+1)}, {v(x+1)}')
                S(f'v_pk_mul_f32 {v(x,2)}, {v(c,2)}, {v(E,2)} op_sel_hi:[1,0]')
                if t == 3:
                    S(f'v_pk_mul_f32 {v(tt,2)}, {v(x,2)}, {v(mp+2,2)} op_sel_hi:[0,1]')
                    S(f'v_pk_fma_f32 {v(x,2)}, {v(x,2)}, {v(mp+2,2)}, {v(tt,2)} op_sel:[1,1,0] op_sel_hi:[1,0,1] neg_lo:[1,0,0] neg_hi:[1,0,1]')
                    H, Lo = ZH + e, ZL + e
                else:
                    H, Lo = RH + 4 * t + e, RL + 4 * t + e
                S(f'v_cvt_pk_bf16_f32 {v(H)}, {v(x)}, {v(x+1)}')
                unpack(S, tt, H)
                S(f'v_pk_add_f32 {v(x,2)}, {v(x,2)}, {v(tt,2)} neg_lo:[0,1] neg_hi:[0,1]')
                S(f'v_cvt_pk_bf16_f32 {v(Lo)}, {v(x)}, {v(x+1)}')
                seqs.append(S)
            interleave(A, seqs)
        for (za, rb) in ((ZH, RH), (ZH, RL), (ZL, RH)):
            for t in range(3):
                A(f'v_mfma_f32_16x16x32_bf16 {v(ACC+4*t,4)}, {v(za,4)}, {v(rb+4*t,4)}, {v(ACC+4*t,4)}')
    stamp(A, 2)
    A('v_lshrrev_b32 v30, 6, v0')
    A('v_readfirstlane_b32 s16, v30')
    A('s_and_b32 s16, s16, 1')
    A('v_cmp_gt_u32 s[18:19], 9, v10')
    A('s_cmp_eq_u32 s16, 0')
    A('s_cbranch_scc1 KG_even')
    for t in range(3):
        A(f'ds_write_b128 v9, {v(ACC+4*t,4)} offset:{1024*t}')
    A('s_waitcnt lgkmcnt(0)')
    A('s_barrier')
    A('s_branch KG_join')
    A.label('KG_even')
    A('s_nop 7')
    A('s_barrier')
    for t in range(3):
        A(f'ds_read_b128 {v(MP+4*t,4)}, v9 offset:{1024*t}')
    A('s_waitcnt lgkmcnt(0)')
    for i in range(0, 12, 2):
        A(f'v_pk_add_f32 {v(ACC+i,2)}, {v(ACC+i,2)}, {v(MP+i,2)}')
    for t in range(2):
        for r in range(4):
            A(f'ds_write_b32 {v(25+t)}, {v(ACC+4*t+r)} offset:{36*r}')
    A('s_mov_b64 exec, s[18:19]')
    for r in range(4):
        A(f'ds_write_b32 v27, {v(ACC+8+r)} offset:{36*r}')
    A('s_mov_b64 exec, -1')
    A('s_waitcnt lgkmcnt(0)')
    A.label('KG_join')
    A('v_lshlrev_b32 v30, 3, v0')
    AD = 52
    for i in range(8):
        A(f'v_add_u32 {v(60+i)}, {i}, v30')
        A(f'v_cvt_f32_u32 {v(60+i)}, {v(60+i)}')
    for i in range(0, 8, 2):
        rnd(A, 60 + i, 31)
    for i in range(8):
        A(f'v_cvt_u32_f32 {v(60+i)}, {v(60+i)}')
        A(f'v_lshrrev_b32 {v(AD+i)}, 3, {v(60+i)}')
        A(f'v_add_lshl_u32 {v(AD+i)}, {v(AD+i)}, {v(60+i)}, 2')
    if FP16:
        A('v_mov_b32 v31, 0')
        A(f'ds_read_b128 v[32:35], v31 offset:{BND}')
    A('s_barrier')
    KV = 68
    for c in range(2):
        for i in range(8):
            A(f'ds_read_b32 {v(KV+8*c+i)}, {v(AD+i)} offset:{4096+KPB*c}')
    A('s_lshl_b32 s16, s3, 13')
    A('v_lshlrev_b32 v30, 4, v0')
    A('v_add_u32 v30, s16, v30')
    A('s_waitcnt lgkmcnt(0)')
    HI, LO = 84, 92
    if FP16:
        A('v_add_f32 v32, v32, v33')
        A('v_add_f32 v34, v34, v35')
        A('v_frexp_exp_i32_f32 v32, v32')
        A('v_frexp_exp_i32_f32 v34, v34')
        A('v_sub_u32 v32, 14, v32')
        A('v_sub_u32 v34, 14, v34')
        for c in range(2):
            for i in range(8):
                A(f'v_ldexp_f32 {v(KV+8*c+i)}, {v(KV+8*c+i)}, {v(32+2*c)}')
            for i in range(0, 8, 2):
                A(f'v_cvt_pk_f16_f32 {v(HI+4*c+i//2)}, {v(KV+8*c+i)}, {v(KV+8*c+i+1)}')
        A('v_sub_u32 v32, 0, v32')
        A('v_sub_u32 v34, 0, v34')
        A('v_ldexp_f32 v36, 1.0, v32')
        A('v_ldexp_f32 v37, 1.0, v34')
        A('s_movk_i32 s16, 0x1000')
        A(f'buffer_store_dwordx4 {v(HI,4)}, v30, s[40:43], 0 offen')
        A(f'buffer_store_dwordx4 {v(HI+4,4)}, v30, s[40:43], s16 offen')
        A('s_lshl_b32 s16, s3, 3')
        A('s_add_u32 s16, s16, 0x10000')
        A('v_mov_b32 v31, s16')
        A('v_cmp_eq_u32 vcc, 0, v0')
        A('s_and_saveexec_b64 s[18:19], vcc')
        A('s_cbranch_execz KG_nosc')
        A('buffer_store_dwordx2 v[36:37], v31, s[56:59], 0 offen')
        A.label('KG_nosc')
        A('s_mov_b64 exec, s[18:19]')
    else:
        for c in range(2):
            seqs = []
            for i in range(0, 8, 2):
                S = Seq()
                x = KV + 8 * c + i
                tt = 100 + i
                S(f'v_cvt_pk_bf16_f32 {v(HI+4*c+i//2)}, {v(x)}, {v(x+1)}')
                unpack(S, tt, HI + 4 * c + i // 2)
                S(f'v_pk_add_f32 {v(x,2)}, {v(x,2)}, {v(tt,2)} neg_lo:[0,1] neg_hi:[0,1]')
                S(f'v_cvt_pk_bf16_f32 {v(LO+4*c+i//2)}, {v(x)}, {v(x+1)}')
                seqs.append(S)
            interleave(A, seqs)
        A('s_movk_i32 s16, 0x1000')
        A(f'buffer_store_dwordx4 {v(HI,4)}, v30, s[40:43], 0 offen')
        A(f'buffer_store_dwordx4 {v(HI+4,4)}, v30, s[40:43], s16 offen')
        A(f'buffer_store_dwordx4 {v(LO,4)}, v30, s[44:47], 0 offen')
        A(f'buffer_store_dwordx4 {v(LO+4,4)}, v30, s[44:47], s16 offen')
    stamp_out(A, 0, 4)


def reduce16(A, V, T):
    for k in range(8):
        A(f'v_permlane32_swap_b32 {v(V+k)}, {v(V+8+k)}')
    for k in range(8):
        A(f'v_add_f32 {v(V+k)}, {v(V+k)}, {v(V+8+k)}')
    for k in range(4):
        A(f'v_permlane16_swap_b32 {v(V+k)}, {v(V+4+k)}')
    for k in range(4):
        A(f'v_add_f32 {v(V+k)}, {v(V+k)}, {v(V+4+k)}')
    for k in range(2):
        A(f'v_add_f32_dpp {v(V+8+k)}, {v(V+k)}, {v(V+k)} row_ror:8 row_mask:0xf bank_mask:0x3')
    for k in range(2):
        A(f'v_add_f32_dpp {v(V+8+k)}, {v(V+2+k)}, {v(V+2+k)} row_ror:8 row_mask:0xf bank_mask:0xc')
    A(f'v_add_f32_dpp {v(T)}, {v(V+8)}, {v(V+8)} row_half_mirror row_mask:0xf bank_mask:0x5')
    A(f'v_add_f32_dpp {v(T)}, {v(V+9)}, {v(V+9)} row_half_mirror row_mask:0xf bank_mask:0xa')
    A(f'v_add_f32_dpp {v(T)}, {v(T)}, {v(T)} quad_perm:[1,0,3,2] row_mask:0xf bank_mask:0xf')
    A(f'v_add_f32_dpp {v(T)}, {v(T)}, {v(T)} quad_perm:[2,3,0,1] row_mask:0xf bank_mask:0xf')


def stats_role(A, B, lds_off, nafter, name):
    XR, YR = B, B + 8
    XP = B + 16
    V = B + 32
    DP = B + 48
    T = B + 64
    OUTR = B + 80
    W4, R5, O7, R6 = B + 84, B + 85, B + 86, B + 87
    PS = 44
    A(f'v_bfe_u32 {v(R6)}, v0, 2, 3')
    A(f'v_lshlrev_b32 {v(R5)}, 3, {v(R6)}')
    A(f'v_lshrrev_b32 {v(W4)}, 6, v0')
    A(f'v_lshl_add_u32 {v(W4)}, {v(W4)}, 6, {v(R5)}')
    A(f'v_and_b32 {v(O7)}, 0x23, v0')
    A(f'v_cmp_eq_u32 s[18:19], 0, {v(O7)}')
    A(f'v_and_b32 {v(O7)}, 0xe3, v0')
    A(f'v_cmp_eq_u32 s[14:15], 0, {v(O7)}')
    A(f's_mov_b32 s40, {f32(1.0/512)}')
    A(f's_mov_b32 s41, {f32(1e-5)}')
    A(f's_mov_b32 s42, {f32(1.0/128)}')
    A(f's_mov_b32 s43, {f32(128.0)}')
    A('s_lshl_b32 s60, s3, 4')
    A(f'v_lshlrev_b32 {v(O7)}, 12, {v(R6)}')
    A(f'v_add_u32 {v(O7)}, s60, {v(O7)}')
    A(f's_waitcnt vmcnt({nafter+2})')
    stamp(A, 1)
    for i in range(8):
        unpack(A, XP + 2 * i, XR + i)
    for ln in range(2):
        for i in range(8):
            A(f'v_readfirstlane_b32 {s(PS+2*i)}, {v(XP+2*i)}')
        for i in range(8):
            A(f'v_add_f32 {v(V+i)}, {v(XP+2*i)}, {v(XP+2*i+1)}')
        for i in range(8):
            A(f'v_pk_add_f32 {v(DP+2*i,2)}, {v(XP+2*i,2)}, {s(PS+2*i,2)} op_sel_hi:[1,0] neg_lo:[0,1] neg_hi:[0,1]')
        for i in range(8):
            A(f'v_writelane_b32 {v(T+2)}, {s(PS+2*i)}, {4*i}')
        for i in range(8):
            A(f'v_mul_f32 {v(V+8+i)}, {v(DP+2*i)}, {v(DP+2*i)}')
        for i in range(8):
            A(f'v_fmac_f32 {v(V+8+i)}, {v(DP+2*i+1)}, {v(DP+2*i+1)}')
        reduce16(A, V, T)
        A(f'v_mov_b32 {v(T+1)}, {v(T)}')
        A(f'v_permlane32_swap_b32 {v(T)}, {v(T+1)}')
        A(f'v_fma_f32 {v(T+2)}, -{v(T+2)}, s43, {v(T)}')
        A(f'v_mul_f32 {v(T+3)}, s42, {v(T+2)}')
        A(f'v_fma_f32 {v(T+1)}, -{v(T+3)}, {v(T+2)}, {v(T+1)}')
        A('s_mov_b64 exec, s[18:19]')
        A(f'ds_write_b64 {v(W4)}, {v(T,2)} offset:{lds_off+256*ln}')
        A('s_mov_b64 exec, -1')
        A('s_waitcnt lgkmcnt(0)')
        A('s_barrier')
        for w in range(4):
            A(f'ds_read_b64 {v(T+4+2*w,2)}, {v(R5)} offset:{lds_off+256*ln+64*w}')
        A('s_waitcnt lgkmcnt(0)')
        A(f'v_pk_add_f32 {v(T,2)}, {v(T+4,2)}, {v(T+6,2)}')
        A(f'v_pk_add_f32 {v(T+2,2)}, {v(T+8,2)}, {v(T+10,2)}')
        A(f'v_pk_add_f32 {v(T,2)}, {v(T,2)}, {v(T+2,2)}')
        A(f'v_mul_f32 {v(T)}, s40, {v(T)}')
        for w in range(4):
            A(f'v_fma_f32 {v(T+4+2*w)}, {v(T+4+2*w)}, s42, -{v(T)}')
        A(f'v_mul_f32 {v(T+2)}, {v(T+4)}, {v(T+4)}')
        for w in range(1, 4):
            A(f'v_fmac_f32 {v(T+2)}, {v(T+4+2*w)}, {v(T+4+2*w)}')
        A(f'v_fma_f32 {v(T+1)}, {v(T+2)}, s43, {v(T+1)}')
        A(f'v_mul_f32 {v(T+1)}, s40, {v(T+1)}')
        rnd(A, T, T + 2)
        M = OUTR + 2 * ln
        A(f'v_mov_b32 {v(M)}, {v(T)}')
        A(f'v_add_f32 {v(T+1)}, s41, {v(T+1)}')
        A(f'v_cvt_pk_bf16_f32 {v(T+1)}, {v(T+1)}, {v(T+1)}')
        A(f'v_lshlrev_b32 {v(T+1)}, 16, {v(T+1)}')
        A(f'v_sqrt_f32 {v(T+1)}, {v(T+1)}')
        A(f'v_cvt_pk_bf16_f32 {v(T+1)}, {v(T+1)}, {v(T+1)}')
        A(f'v_lshlrev_b32 {v(T+1)}, 16, {v(T+1)}')
        A(f'v_rcp_f32 {v(M+1)}, {v(T+1)}')
        if ln == 0:
            for i in range(8):
                A(f'v_readlane_b32 {s(PS+2*i)}, {v(M)}, {4*i}')
                A(f'v_readlane_b32 {s(PS+2*i+1)}, {v(M+1)}, {4*i}')
            A(f's_waitcnt vmcnt({nafter})')
            seqs = []
            for i in range(8):
                S = Seq()
                d = DP + 2 * i
                y = V + 2 * i
                tm = T + i
                S(f'v_pk_add_f32 {v(d,2)}, {v(XP+2*i,2)}, {s(PS+2*i,2)} op_sel_hi:[1,0] neg_lo:[0,1] neg_hi:[0,1]')
                rnd(S, d, tm)
                S(f'v_pk_mul_f32 {v(d,2)}, {v(d,2)}, {s(PS+2*i,2)} op_sel:[0,1] op_sel_hi:[1,1]')
                rnd(S, d, tm)
                unpack(S, y, YR + i)
                S(f'v_pk_mul_f32 {v(d,2)}, {v(d,2)}, {v(y,2)}')
                rnd(S, d, tm)
                S(f'v_pk_add_f32 {v(XP+2*i,2)}, {v(XP+2*i,2)}, {v(d,2)}')
                rnd(S, XP + 2 * i, tm)
                seqs.append(S)
            interleave(A, seqs)
    for k in range(4):
        A(f'v_min_u32 {v(OUTR+k)}, 0xfffffffe, {v(OUTR+k)}')
    A('s_and_saveexec_b64 s[16:17], s[14:15]')
    A(f's_cbranch_execz {name}_nopub')
    A(f'buffer_store_dwordx4 {v(OUTR,4)}, {v(O7)}, s[28:31], 0 offen sc1')
    A.label(f'{name}_nopub')
    A('s_mov_b64 exec, s[16:17]')


VA, VB, VEW, VER, VT = 42, 43, 5, 7, 4
SG, XR_C, DPAR = 24, 32, 6
FR = 8


def conv_pads_and_addrs(A, nparts):
    CH = ch_bytes(nparts)
    for i in range(4):
        A(f'v_mov_b32 {v(90+i)}, 0')
    A('v_and_b32 v5, 31, v0')
    A('v_lshlrev_b32 v5, 4, v5')
    A('v_lshrrev_b32 v7, 5, v0')
    A('v_and_b32 v94, 1, v7')
    A('v_lshrrev_b32 v95, 1, v7')
    A(f'v_mul_u32_u24 v94, {CH}, v94')
    A(f'v_mul_u32_u24 v95, {FP}, v95')
    A('v_add3_u32 v5, v5, v94, v95')
    A(f'v_cmp_gt_u32 vcc, {64*nparts}, v0')
    A('s_and_saveexec_b64 s[18:19], vcc')
    A(f'ds_write_b128 v5, v[90:93] offset:{4*CP}')
    A('s_mov_b64 exec, s[18:19]')
    A('v_lshrrev_b32 v7, 2, v0')
    A('v_and_b32 v94, 3, v7')
    A('v_lshrrev_b32 v95, 2, v7')
    A(f'v_mul_u32_u24 v94, {CP}, v94')
    A(f'v_mul_u32_u24 v95, {CH}, v95')
    A('v_and_b32 v5, 3, v0')
    A('v_lshlrev_b32 v5, 4, v5')
    A('v_add3_u32 v5, v5, v94, v95')
    A('v_cmp_gt_u32 vcc, 32, v0')
    A('s_and_saveexec_b64 s[18:19], vcc')
    A('ds_write_b128 v5, v[90:93] offset:4096')
    A('s_mov_b64 exec, s[18:19]')
    A('v_and_b32 v90, 15, v0')
    A('v_bfe_u32 v91, v0, 4, 2')
    A('v_lshrrev_b32 v92, 7, v0')
    A('v_bfe_u32 v93, v0, 6, 1')
    A(f'v_mul_u32_u24 v92, {CH}, v92')
    A('v_lshlrev_b32 v93, 8, v93')
    A('v_sub_u32 v92, v92, v93')
    A('v_sub_u32 v94, 3, v90')
    A('v_and_b32 v94, 3, v94')
    A(f'v_mul_u32_u24 v95, {CP}, v94')
    A('v_add_u32 v96, v90, v94')
    A('v_lshlrev_b32 v97, 3, v91')
    A('v_sub_u32 v96, v97, v96')
    A('v_lshlrev_b32 v96, 1, v96')
    A('v_add3_u32 v96, v96, v95, v92')
    A(f'v_add_u32 {v(VA)}, {2*2039-64*63+256}, v96')
    A('v_lshlrev_b32 v96, 5, v90')
    A('v_lshl_add_u32 v96, v91, 4, v96')
    A('v_add_u32 v96, v96, v92')
    A(f'v_add_u32 {v(VB)}, {4*CP+480-448}, v96')
    A('v_lshrrev_b32 v96, 6, v0')
    A(f'v_mul_u32_u24 v96, {EX_W}, v96')
    A('v_mul_u32_u24 v97, 80, v90')
    A('v_lshlrev_b32 v98, 4, v91')
    A(f'v_add3_u32 {v(VEW)}, v96, v97, v98')
    A('v_lshrrev_b32 v96, 1, v0')
    A('v_mul_u32_u24 v96, 80, v96')
    A('v_and_b32 v97, 1, v0')
    A(f'v_lshl_add_u32 {v(VER)}, v97, 5, v96')
    A(f'v_sub_u32 {v(VT)}, 256, v0')
    A(f'v_lshlrev_b32 {v(VT)}, 4, {v(VT)}')
    for i in range(32):
        A(f'v_accvgpr_write_b32 {a(i)}, 0')


def conv_filter_to_lds(A, nparts):
    CH = ch_bytes(nparts)
    for c in range(2):
        for part in range(nparts):
            A(f'ds_write_b128 v2, {v(FR+4*(2*part+c),4)} offset:{c*CH+4*CP+part*FP+512}')


def conv_toeplitz(A, nparts, src):
    CH = ch_bytes(nparts)
    A('s_mov_b32 s40, 0x05040100')
    A('s_mov_b32 s41, 0x07060302')
    for c in range(2):
        sel = 's40' if c == 0 else 's41'
        E = 100 + 8 * c
        O = E + 4
        base = c * CH
        for k in range(4):
            A(f'v_perm_b32 {v(E+k)}, {v(src+6-2*k)}, {v(src+7-2*k)}, {sel}')
        for k in range(3):
            A(f'v_perm_b32 {v(O+k)}, {v(src+5-2*k)}, {v(src+6-2*k)}, {sel}')
        w16 = 'ds_write_b16' if c == 0 else 'ds_write_b16_d16_hi'
        A(f'ds_write_b128 {v(VT)}, {v(E,4)} offset:{base}')
        b2 = base + 2 * CP
        for k in range(4):
            A(f'ds_write_b32 {v(VT)}, {v(E+k)} offset:{b2-4+4*k}')
        b1 = base + CP
        A(f'{w16} {v(VT)}, {v(src+7)} offset:{b1-2}')
        A(f'ds_write_b64 {v(VT)}, {v(O,2)} offset:{b1}')
        A(f'ds_write_b32 {v(VT)}, {v(O+2)} offset:{b1+8}')
        A(f'{w16} {v(VT)}, {v(src)} offset:{b1+12}')
        b3 = base + 3 * CP
        A(f'{w16} {v(VT)}, {v(src+7)} offset:{b3-6}')
        for k in range(3):
            A(f'ds_write_b32 {v(VT)}, {v(O+k)} offset:{b3-4+4*k}')
        A(f'{w16} {v(VT)}, {v(src)} offset:{b3+8}')
    A('s_waitcnt lgkmcnt(0)')
    A('s_barrier')


def conv_mfma(A, nparts, f16):
    AF = [48, 80]
    BF = 112
    op = 'v_mfma_f32_16x16x32_f16' if f16 else 'v_mfma_f32_16x16x32_bf16'
    pend = []

    def issue(text, key):
        A(text)
        pend.append(key)

    def needed(keys):
        last = -1
        for i, k in enumerate(pend):
            if k in keys:
                last = i
        if last >= 0:
            n = len(pend) - 1 - last
            A(f's_waitcnt lgkmcnt({min(n, 15)})')
            del pend[:len(pend) - min(n, 15)]

    def a_loads(kp, al):
        buf = kp & 1
        off = 64 * (63 - 8 * al - kp) - 256
        return [(f'ds_read_b64 {v(AF[buf]+4*al,2)}, {v(VA)} offset:{off}', ('A', buf, al)),
                (f'ds_read_b64 {v(AF[buf]+4*al+2,2)}, {v(VA)} offset:{off+8}', ('A', buf, al))]

    def b_loads(kp, be):
        return [(f'ds_read_b128 {v(BF+32*part+4*be,4)}, {v(VB)} offset:{64*(8*be-kp+7)+part*FP}', ('B', be))
                for part in range(nparts)]
    for t in b_loads(0, 0):
        issue(*t)
    for al in range(8):
        for t in a_loads(0, al):
            issue(*t)
    for be in range(1, 8):
        for t in b_loads(0, be):
            issue(*t)
    for kp in range(4):
        buf = kp & 1
        nxtA = []
        if kp < 3:
            for al in range(8):
                nxtA += a_loads(kp + 1, al)
        ai = 0
        cnt = 0
        for be in range(8):
            for al in range(8 - be):
                for part in range(nparts):
                    needed({('A', buf, al), ('B', be)})
                    A(f'{op} {a(4*(al+be),4)}, {v(AF[buf]+4*al,4)}, {v(BF+32*part+4*be,4)}, {a(4*(al+be),4)}')
                    cnt += 1
                    if ai < len(nxtA) and cnt % nparts == 0 and cnt >= 2 * nparts:
                        issue(*nxtA[ai])
                        ai += 1
            if kp < 3:
                for t in b_loads(kp + 1, be):
                    issue(*t)
        while ai < len(nxtA):
            issue(*nxtA[ai])
            ai += 1


def conv_exchange(A):
    A('s_barrier')
    for tau in range(8):
        A(f'ds_write_b128 {v(VEW)}, {a(4*tau,4)} offset:{1280*tau}')
    A('s_waitcnt lgkmcnt(0)')
    A('s_barrier')
    Y = 48
    for w in range(4):
        A(f'ds_read_b128 {v(Y+8*w,4)}, {v(VER)} offset:{EX_W*w}')
        A(f'ds_read_b128 {v(Y+8*w+4,4)}, {v(VER)} offset:{EX_W*w+16}')
    A('s_waitcnt lgkmcnt(0)')


def conv_epilogue(A, mode, scale=None):
    Y = 48
    OUT = 88
    seqs = []
    for i in range(8):
        S = Seq()
        y = 100 + 8 * i
        sgp = y + 2
        tm = y + 4
        xx = y + 6
        S(f'v_add_f32 {v(y)}, {v(Y+i)}, {v(Y+8+i)}')
        S(f'v_add_f32 {v(y+1)}, {v(Y+16+i)}, {v(Y+24+i)}')
        if scale is not None:
            S(f'v_pk_mul_f32 {v(y,2)}, {v(y,2)}, {v(scale,2)}')
        rnd(S, y, tm)
        unpack(S, sgp, SG + i)
        S(f'v_pk_mul_f32 {v(sgp,2)}, {v(sgp,2)}, v[40:41]')
        rnd(S, sgp, tm)
        S(f'v_pk_add_f32 {v(y,2)}, {v(y,2)}, {v(sgp,2)}')
        if mode == 'A':
            S(f'v_cvt_pk_bf16_f32 {v(OUT+i)}, {v(y)}, {v(y+1)}')
        else:
            rnd(S, y, tm)
            unpack(S, xx, XR_C + i)
            S(f'v_pk_add_f32 {v(y,2)}, {v(y,2)}, {v(xx,2)}')
            S(f'v_cvt_pk_bf16_f32 {v(OUT+i)}, {v(y)}, {v(y+1)}')
        seqs.append(S)
    interleave(A, seqs)
    return OUT


def gen_f1():
    A = Asm()
    A('s_cmp_ge_u32 s2, 512')
    A('s_cbranch_scc1 F1_done')
    stamp(A, 0)
    A('s_cmp_lt_u32 s2, 256')
    A('s_cbranch_scc1 F1_kgen')
    A('s_setprio 3')
    A(f's_load_dwordx8 s[4:11], s[0:1], {KA_Q}')
    A(f's_load_dwordx4 s[60:63], s[0:1], {KA_SSMK}')
    A(f's_load_dwordx4 s[12:15], s[0:1], {KA_DBG}')
    A('s_sub_u32 s16, s2, 256')
    xcd_id(A, 3, 16, 17)
    A('s_lshr_b32 s17, s3, 5')
    A('s_and_b32 s18, s3, 31')
    A('v_and_b32 v110, 31, v0')
    A('v_lshrrev_b32 v111, 5, v0')
    A('s_lshl_b32 s19, s17, 5')
    A('v_add_u32 v110, s19, v110')
    A('s_lshl_b32 s19, s18, 16')
    A('v_lshlrev_b32 v112, 13, v111')
    A('v_lshl_add_u32 v112, v110, 2, v112')
    A('v_add_u32 v112, s19, v112')
    A('v_subrev_u32 v113, 3072, v112')
    A('v_cmp_gt_i32 vcc, 0, v113')
    A('v_cndmask_b32 v113, v113, 2.0, vcc')
    A('v_lshlrev_b32 v114, 4, v110')
    A(f's_mov_b32 s19, {PITCH}')
    A('v_mul_lo_u32 v115, v110, s19')
    A('s_lshl_b32 s19, s18, 8')
    A('v_lshl_add_u32 v115, v111, 5, v115')
    A('v_add_u32 v115, s19, v115')
    A('s_movk_i32 s19, 0x1000')
    A(f's_mul_i32 s84, s3, {PITCH}')
    A('s_lshl_b32 s85, s3, 13')
    A('s_add_u32 s86, s85, 4096')
    A('s_lshl_b32 s87, s3, 2')
    A('v_lshlrev_b32 v1, 5, v0')
    A('v_lshlrev_b32 v2, 4, v0')
    A('v_mov_b32 v3, s87')
    A('s_waitcnt lgkmcnt(0)')
    srd(A, 20, 4, 0, 2 * L * D)
    srd(A, 24, 6, 0, 2 * L * D)
    srd(A, 28, 8, 0, 2 * L * D)
    srd(A, 32, 10, 0, 8 * D)
    KR, VR, XR, WR = 120, 132, 140, 148
    A(f'buffer_load_dwordx4 {v(WR,4)}, v114, s[32:35], 0 offen')
    for i in range(3):
        A(f'buffer_load_dword {v(KR+i)}, v113, s[24:27], 0 offen offset:{1024*i}')
    for i in range(8):
        A(f'buffer_load_dword {v(KR+3+i)}, v112, s[24:27], {"0" if i < 4 else "s19"} offen offset:{1024*(i%4)}')
    for i in range(8):
        A(f'buffer_load_dword {v(VR+i)}, v112, s[28:31], {"0" if i < 4 else "s19"} offen offset:{1024*(i%4)}')
    for i in range(8):
        A(f'buffer_load_dword {v(XR+i)}, v112, s[20:23], {"0" if i < 4 else "s19"} offen offset:{1024*(i%4)}')
    srd(A, 36, 14, WS_KVT, TBYTES)
    srd(A, 40, 14, WS_X0T, TBYTES)
    srd(A, 44, 60, 0, 2 * D * L)
    srd(A, 48, 62, 0, 2 * D)
    for c in range(2):
        A(f'buffer_load_dwordx4 {v(FR+4*c,4)}, v2, s[44:47], {"s85" if c == 0 else "s86"} offen')
    A(f'buffer_load_dword {v(DPAR)}, v3, s[48:51], 0 offen')
    srd(A, 20, 12, 0, 256)
    conv_pads_and_addrs(A, 1)
    KP, WP = 152, 174
    A('s_waitcnt vmcnt(30)')
    A(f'v_lshlrev_b32 {v(WP+0)}, 16, {v(WR+0)}')
    A(f'v_lshlrev_b32 {v(WP+1)}, 16, {v(WR+2)}')
    A(f'v_and_b32 {v(WP+2)}, 0xffff0000, {v(WR+0)}')
    A(f'v_and_b32 {v(WP+3)}, 0xffff0000, {v(WR+2)}')
    A(f'v_lshlrev_b32 {v(WP+4)}, 16, {v(WR+1)}')
    A(f'v_lshlrev_b32 {v(WP+5)}, 16, {v(WR+3)}')
    A(f'v_and_b32 {v(WP+6)}, 0xffff0000, {v(WR+1)}')
    A(f'v_and_b32 {v(WP+7)}, 0xffff0000, {v(WR+3)}')
    A('s_waitcnt vmcnt(19)')
    for i in range(11):
        unpack(A, KP + 2 * i, KR + i)
    A('s_waitcnt vmcnt(11)')
    stamp(A, 1)
    OUT = 48
    TMP = 56
    for grp in range(2):
        seqs = []
        for q in range(4):
            srow = 4 * grp + q
            S = Seq()
            acc = TMP + 8 * q
            t = acc + 2
            tm = acc + 4
            vv = acc + 6
            S(f'v_pk_mul_f32 {v(acc,2)}, {v(KP+2*srow,2)}, {v(WP+6,2)}')
            rnd(S, acc, tm)
            for j in range(1, 4):
                S(f'v_pk_mul_f32 {v(t,2)}, {v(KP+2*(srow+j),2)}, {v(WP+2*(3-j),2)}')
                rnd(S, t, tm)
                S(f'v_pk_add_f32 {v(acc,2)}, {v(acc,2)}, {v(t,2)}')
                rnd(S, acc, tm)
            unpack(S, vv, VR + srow)
            S(f'v_pk_mul_f32 {v(acc,2)}, {v(acc,2)}, {v(vv,2)}')
            S(f'v_cvt_pk_bf16_f32 {v(OUT+srow)}, {v(acc)}, {v(acc+1)}')
            seqs.append(S)
        interleave(A, seqs)
    A(f'buffer_store_dwordx4 {v(OUT,4)}, v115, s[36:39], 0 offen sc1')
    A(f'buffer_store_dwordx4 {v(OUT+4,4)}, v115, s[36:39], 0 offen offset:16 sc1')
    stamp(A, 2)
    A('s_waitcnt vmcnt(2)')
    conv_filter_to_lds(A, 1)
    A('s_waitcnt vmcnt(0)')
    A('s_barrier')
    A('s_lshl_b32 s88, s17, 5')
    A('v_mov_b32 v110, s88')
    A('v_mov_b32 v111, 1')
    A('v_cmp_eq_u32 vcc, 0, v0')
    A('s_and_saveexec_b64 s[18:19], vcc')
    A('s_cbranch_execz F1_nosig')
    A('buffer_atomic_add v111, v110, s[20:23], 0 offen sc1')
    A.label('F1_nosig')
    A('s_mov_b64 exec, s[18:19]')
    A(f'buffer_store_dwordx4 {v(XR,4)}, v115, s[40:43], 0 offen')
    A(f'buffer_store_dwordx4 {v(XR+4,4)}, v115, s[40:43], 0 offen offset:16')
    stamp(A, 3)
    A('v_readfirstlane_b32 s88, v0')
    A('s_cmp_ge_u32 s88, 64')
    A('s_cbranch_scc1 F1_go')
    A('s_mov_b32 s89, 0')
    A.label('F1_poll')
    A('buffer_load_dword v111, v110, s[20:23], 0 offen sc1')
    A('s_waitcnt vmcnt(0)')
    A('v_readfirstlane_b32 s88, v111')
    A('s_add_u32 s89, s89, 1')
    A('s_cmp_ge_u32 s88, 32')
    A('s_cbranch_scc1 F1_go')
    A('s_sleep 2')
    A(f's_cmp_lt_u32 s89, {SPIN_MAX}')
    A('s_cbranch_scc1 F1_poll')
    A.label('F1_go')
    A('s_barrier')
    A(f'buffer_load_dwordx4 {v(SG,4)}, v1, s[36:39], s84 offen sc1')
    A(f'buffer_load_dwordx4 {v(SG+4,4)}, v1, s[36:39], s84 offen offset:16 sc1')
    srd(A, 24, 14, WS_YAT, TBYTES)
    unpack(A, 40, DPAR)
    stamp(A, 4)
    A('s_waitcnt vmcnt(0)')
    stamp(A, 5)
    conv_toeplitz(A, 1, SG)
    stamp(A, 6)
    conv_mfma(A, 1, False)
    stamp(A, 7)
    conv_exchange(A)
    OUTE = conv_epilogue(A, 'A')
    stamp(A, 8)
    A(f'buffer_store_dwordx4 {v(OUTE,4)}, v1, s[24:27], s84 offen')
    A(f'buffer_store_dwordx4 {v(OUTE+4,4)}, v1, s[24:27], s84 offen offset:16')
    stamp_out(A, 0, 10)
    A('s_endpgm')
    A.label('F1_kgen')
    gen_kgen(A)
    A.label('F1_done')
    A('s_endpgm')
    return A


def gen_f23(name, mode):
    nparts = 1 if FP16 else 2
    kidx = 1 if mode == 'B1' else 2
    A = Asm()
    A('s_cmp_ge_u32 s2, 256')
    A(f's_cbranch_scc1 {name}_done')
    stamp(A, 0)
    A(f's_load_dwordx2 s[12:13], s[0:1], {KA_WS}')
    A(f's_load_dwordx4 s[4:7], s[0:1], {KA_DSK}')
    xcd_id(A, 3, 2, 14)
    SB = 120
    A(f's_mov_b32 s17, {PITCH}')
    A('v_mul_lo_u32 v3, v0, s17')
    A('s_lshl_b32 s16, s3, 5')
    A('v_add_u32 v110, s16, v3')
    A(f's_mul_i32 s84, s3, {PITCH}')
    A('s_lshl_b32 s85, s3, 13')
    A('s_add_u32 s86, s85, 4096')
    A('s_lshl_b32 s87, s3, 2')
    A('v_lshlrev_b32 v1, 5, v0')
    A('v_lshlrev_b32 v2, 4, v0')
    A('v_mov_b32 v3, s87')
    A('s_lshl_b32 s16, s3, 3')
    A('v_mov_b32 v111, s16')
    A('s_waitcnt lgkmcnt(0)')
    srd(A, 20, 12, WS_X0T if mode == 'B1' else WS_X2T, TBYTES)
    srd(A, 24, 12, WS_YAT, TBYTES)
    A(f'buffer_load_dwordx4 {v(SB,4)}, v110, s[20:23], 0 offen')
    A(f'buffer_load_dwordx4 {v(SB+4,4)}, v110, s[20:23], 0 offen offset:16')
    A(f'buffer_load_dwordx4 {v(SB+8,4)}, v110, s[24:27], 0 offen')
    A(f'buffer_load_dwordx4 {v(SB+12,4)}, v110, s[24:27], 0 offen offset:16')
    srd(A, 28, 12, WS_ST1 if mode == 'B1' else WS_ST2, 16 * L)
    srd(A, 32, 12, WS_KHI, 2 * D * L)
    srd(A, 36, 12, WS_KLO, 2 * D * L)
    srd(A, 8, 4, 0, 2 * D)
    YR = 44
    nafter = 0
    for c in range(2):
        for part in range(nparts):
            A(f'buffer_load_dwordx4 {v(FR+4*(2*part+c),4)}, v2, s[{32+4*part}:{35+4*part}], {"s85" if c == 0 else "s86"} offen')
            nafter += 1
    A(f'buffer_load_dword {v(DPAR)}, v3, s[8:11], 0 offen')
    A(f'buffer_load_dwordx4 {v(XR_C,4)}, v1, s[20:23], s84 offen')
    A(f'buffer_load_dwordx4 {v(XR_C+4,4)}, v1, s[20:23], s84 offen offset:16')
    A(f'buffer_load_dwordx4 {v(YR,4)}, v1, s[24:27], s84 offen')
    A(f'buffer_load_dwordx4 {v(YR+4,4)}, v1, s[24:27], s84 offen offset:16')
    nafter += 5
    SC = 22
    if FP16:
        srd(A, 36, 12, WS_KSC, 4 * D)
        A(f'buffer_load_dwordx2 {v(SC,2)}, v111, s[36:39], 0 offen')
        nafter += 1
    if mode == 'B1':
        srd(A, 32, 12, WS_X2T, TBYTES)
    else:
        srd(A, 32, 6, 0, 2 * L * D)
    conv_pads_and_addrs(A, nparts)
    stats_role(A, SB, 2 * ch_bytes(nparts), nafter, name)
    stamp(A, 2)
    A('s_waitcnt vmcnt(1)')
    conv_filter_to_lds(A, nparts)
    unpack(A, 40, DPAR)
    STR = 52
    A('s_mov_b32 s89, 0')
    A.label(f'{name}_poll0')
    A(f'buffer_load_dword {v(STR)}, v2, s[28:31], 0 offen offset:12 sc1')
    A('s_waitcnt vmcnt(0)')
    A(f'v_cmp_eq_u32 vcc, -1, {v(STR)}')
    A('s_add_u32 s89, s89, 1')
    A(f's_cbranch_vccz {name}_poll')
    A('s_sleep 1')
    A(f's_cmp_lt_u32 s89, {SPIN_MAX}')
    A(f's_cbranch_scc1 {name}_poll0')
    A.label(f'{name}_poll')
    for i in range(8):
        A(f's_movk_i32 s88, 0x{4096*i:x}')
        A(f'buffer_load_dwordx4 {v(STR+4*i,4)}, v2, s[28:31], s88 offen sc1')
    A('s_waitcnt vmcnt(0)')
    A(f'v_max3_u32 v100, {v(STR)}, {v(STR+1)}, {v(STR+2)}')
    A(f'v_max3_u32 v101, {v(STR+3)}, {v(STR+4)}, {v(STR+5)}')
    k = 6
    while k < 32:
        A(f'v_max3_u32 v100, v100, {v(STR+k)}, {v(STR+k+1)}')
        if k + 3 < 32:
            A(f'v_max3_u32 v101, v101, {v(STR+k+2)}, {v(STR+k+3)}')
        k += 4
    A('v_max_u32 v100, v100, v101')
    A('v_cmp_eq_u32 vcc, -1, v100')
    A('s_add_u32 s89, s89, 1')
    A(f's_cbranch_vccz {name}_go')
    A('s_sleep 1')
    A(f's_cmp_lt_u32 s89, {SPIN_MAX}')
    A(f's_cbranch_scc1 {name}_poll')
    A.label(f'{name}_go')
    stamp(A, 3)
    seqs = []
    US = 84
    for i in range(8):
        S = Seq()
        x = 100 + 8 * i
        d = x + 2
        y = x + 4
        tm = x + 6
        st = STR + 4 * i
        unpack(S, x, XR_C + i)
        S(f'v_pk_add_f32 {v(d,2)}, {v(x,2)}, {v(st,2)} op_sel_hi:[1,0] neg_lo:[0,1] neg_hi:[0,1]')
        rnd(S, d, tm)
        S(f'v_pk_mul_f32 {v(d,2)}, {v(d,2)}, {v(st,2)} op_sel:[0,1] op_sel_hi:[1,1]')
        rnd(S, d, tm)
        unpack(S, y, YR + i)
        S(f'v_pk_mul_f32 {v(d,2)}, {v(d,2)}, {v(y,2)}')
        rnd(S, d, tm)
        S(f'v_pk_add_f32 {v(x,2)}, {v(x,2)}, {v(d,2)}')
        rnd(S, x, XR_C + i)
        S(f'v_pk_add_f32 {v(d,2)}, {v(x,2)}, {v(st+2,2)} op_sel_hi:[1,0] neg_lo:[0,1] neg_hi:[0,1]')
        rnd(S, d, tm)
        S(f'v_pk_mul_f32 {v(d,2)}, {v(d,2)}, {v(st+2,2)} op_sel:[0,1] op_sel_hi:[1,1]')
        if FP16:
            rnd(S, d, SG + i)
            S(f'v_cvt_pk_f16_f32 {v(US+i)}, {v(d)}, {v(d+1)}')
        else:
            S(f'v_cvt_pk_bf16_f32 {v(SG+i)}, {v(d)}, {v(d+1)}')
        seqs.append(S)
    interleave(A, seqs)
    stamp(A, 4)
    conv_toeplitz(A, nparts, US if FP16 else SG)
    stamp(A, 5)
    conv_mfma(A, nparts, bool(FP16))
    stamp(A, 6)
    conv_exchange(A)
    stamp(A, 7)
    OUT = conv_epilogue(A, mode, SC if FP16 else None)
    stamp(A, 8)
    if mode == 'B1':
        A(f'buffer_store_dwordx4 {v(OUT,4)}, v1, s[32:35], s84 offen')
        A(f'buffer_store_dwordx4 {v(OUT+4,4)}, v1, s[32:35], s84 offen offset:16')
    else:
        A('v_lshlrev_b32 v1, 13, v0')
        A('s_add_u32 s16, s87, 4096')
        for i in range(8):
            A(f'buffer_store_dword {v(OUT+i)}, v1, s[32:35], {"s87" if i < 4 else "s16"} offen offset:{1024*(i%4)}')
    stamp_out(A, kidx, 10)
    A.label(f'{name}_done')
    A('s_endpgm')
    return A


HEADER = open('interleave_layers__ssm_conv_h3__ssm_conv_s4d__prompt.s.ref').read().split('; Override launch')[0]


def kernel_text(name, A):
    nv, na, ns = A.max_regs()
    acc = (max(nv, 4) + 3) // 4 * 4
    nfv = acc + na if na else nv
    body = A.finalize()
    txt = f'.globl {name}\n.p2align 8\n.type {name},@function\n{name}:\n{body}'
    kd = f'''.amdhsa_kernel {name}
  .amdhsa_next_free_vgpr {nfv}
  .amdhsa_next_free_sgpr {max(ns, 16)}
  .amdhsa_accum_offset {acc}
  .amdhsa_group_segment_fixed_size 0
  .amdhsa_kernarg_size 128
  .amdhsa_user_sgpr_count 2
  .amdhsa_user_sgpr_kernarg_segment_ptr 1
  .amdhsa_system_sgpr_workgroup_id_x 1
  .amdhsa_float_denorm_mode_32 3
.end_amdhsa_kernel
'''
    return txt, kd


def main(out):
    npb = 1 if FP16 else 2
    ks = [
        ('f1_kernel', gen_f1(), 512, max(KGEN_LDS, conv_lds(1))),
        ('f2_kernel', gen_f23('F2', 'B1'), 256, conv_lds(npb)),
        ('f3_kernel', gen_f23('F3', 'B2'), 256, conv_lds(npb)),
    ]
    txt = HEADER
    for name, A, g, lds in ks:
        txt += f'; @launch kernel={name} grid=({g},1,1) block=(256,1,1) lds={lds}\n'
    txt += '.amdgcn_target "amdgcn-amd-amdhsa--gfx950"\n.text\n'
    kds = ''
    for name, A, g, lds in ks:
        t, kd = kernel_text(name, A)
        txt += t
        kds += '.p2align 6\n' + kd
    txt += '.section .rodata,"a"\n' + kds
    open(out, 'w').write(txt)


if __name__ == '__main__':
    main(sys.argv[1] if len(sys.argv) > 1 else 'interleave_layers__ssm_conv_h3__ssm_conv_s4d__prompt.s')
```
